```python
import torch

def _softmax(x, axis=-1):
    return torch.softmax(x, dim=axis)
def _gelu(x):
    return torch.nn.functional.gelu(x, approximate="tanh")
def _silu(x):
    return torch.nn.functional.silu(x)
def _sigmoid(x):
    return torch.sigmoid(x)
def _layernorm(x, axis=-1, eps=1e-5):
    m = x.mean(dim=axis, keepdim=True)
    v = x.var(dim=axis, keepdim=True, unbiased=False)
    return (x - m) / torch.sqrt(v + eps)
def _scatter_add(tgt, idx, src, axis=0):
    return tgt.clone().index_add_(axis, idx, src)
def _segment_sum(src, seg, n):
    out = torch.zeros((n,) + src.shape[1:], dtype=src.dtype)
    return out.index_add_(0, seg, src)
def _pad(x, pw):
    flat = tuple(v for pair in reversed(pw) for v in pair)
    return torch.nn.functional.pad(x, flat)

kernel_name = 'gated_mix__ssm_conv_s4d__dense_activation_silu__prompt'

def setup_inputs():

    _w = (lambda a: (lambda t: t.to(torch.bfloat16) if t.is_floating_point() else t)(torch.as_tensor(a)))
    def _A_setup():
        Bsz, L, D, N = 1, 2048, 512, 128
        return {
            "u": _w((lambda *s: torch.randn(*s, dtype=torch.bfloat16) * 0.05)(Bsz, L, D)),
            "log_A_real": _w((lambda *s: torch.randn(*s, dtype=torch.bfloat16) * 6.4)(D, N) * 0.5),
            "A_imag": _w((lambda *s: torch.randn(*s, dtype=torch.bfloat16) * 0.05)(D, N) * 3.14),
            "C_real": _w((lambda *s: torch.randn(*s, dtype=torch.bfloat16) * 0.2)(D, N) / N ** 0.5),
            "C_imag": _w((lambda *s: torch.randn(*s, dtype=torch.bfloat16) * 0.2)(D, N) / N ** 0.5),
            "log_dt": _w((lambda *s: torch.randn(*s, dtype=torch.bfloat16) * 0.05)(D) * 0.5 - 4.0),
            "D_skip": _w((lambda *s: torch.randn(*s, dtype=torch.bfloat16) * 0.05)(D)),
        }
    _A_in = _A_setup()

    def _B_setup():
        B, S, D, F = 1, 2048, 512, 1792
        return {
            "x": _w((lambda *s: torch.randn(*s, dtype=torch.bfloat16) * 0.05)(B, S, D)),
            "w1": _w((lambda *s: torch.randn(*s, dtype=torch.bfloat16) * 6.4)(D, F) * (D ** -0.5)),
            "w2": _w((lambda *s: torch.randn(*s, dtype=torch.bfloat16) * 0.2)(F, D) * (F ** -0.5)),
        }
    _B_in = _B_setup()

    return {
        "A_u": _A_in["u"],
        "A_log_A_real": _A_in["log_A_real"],
        "A_A_imag": _A_in["A_imag"],
        "A_C_real": _A_in["C_real"],
        "A_C_imag": _A_in["C_imag"],
        "A_log_dt": _A_in["log_dt"],
        "A_D_skip": _A_in["D_skip"],
        "B_x": _B_in["x"],
        "B_w1": _B_in["w1"],
        "B_w2": _B_in["w2"],
        "gate_w": _w((lambda *s: torch.randn(*s, dtype=torch.bfloat16) * 0.05)(512) * 16.0),
    }

def reference(A_u, A_log_A_real, A_A_imag, A_C_real, A_C_imag, A_log_dt, A_D_skip, B_x, B_w1, B_w2, gate_w):
    def _A_ref(u, log_A_real, A_imag, C_real, C_imag, log_dt, D_skip):
        L = u.shape[1]
        dt = torch.exp(log_dt)
        A = -torch.exp(log_A_real) + 1j * A_imag
        C = (C_real + 1j * C_imag) * dt[:, None]
        pos = (lambda x, dt: x.to(dt))(torch.arange(L), log_dt.dtype)
        P = torch.exp((A * dt[:, None])[:, :, None] * pos[None, None, :])
        K = 2.0 * torch.einsum("dn,dnl->dl", C, P).real
        L2 = 2 * L
        u_t = (lambda x, *d: x.permute(*d))(u, 0, 2, 1)
        Kf = (lambda x, *a, **k: torch.fft.rfft(x.float(), *a, **k))(K, L2)
        Uf = (lambda x, *a, **k: torch.fft.rfft(x.float(), *a, **k))(u_t, L2)
        y = (lambda x, *a, **k: torch.fft.irfft(x, *a, **k).to(torch.bfloat16))(Uf * Kf[None, :, :], L2)[:, :, :L]
        y = (lambda x, *d: x.permute(*d))(y, 0, 2, 1)
        return y + u * D_skip[None, None, :]

    def _B_ref(x, w1, w2):
        h = torch.einsum("bsd,df->bsf", x, w1)
        h = _silu(h)
        out = torch.einsum("bsf,fd->bsd", h, w2)
        return out

    x = A_u
    g = _sigmoid((x * gate_w).sum(-1, keepdims=True))
    a = _A_ref(x, A_log_A_real, A_A_imag, A_C_real, A_C_imag, A_log_dt, A_D_skip)
    b = _B_ref(x, B_w1, B_w2)
    return g * a + (1 - g) * b
```

```python
KNAME = "gated_mix__ssm_conv_s4d__dense_activation_silu__prompt_kernel"
class Asm:
    def __init__(self):
        self.lines = []
        self.nlabel = 0
    def __call__(self, s):
        for l in s.split("\n"):
            l = l.strip()
            if l: self.lines.append(("" if l.endswith(":") else "    ") + l)
    def label(self, p="L"):
        self.nlabel += 1
        return f"{p}_{self.nlabel}"
    def text(self): return "\n".join(self.lines) + "\n"

def kernel_wrap(name, body, vgpr=256, sgpr=102, accum=None, extra_desc=""):
    if accum is None: accum = (vgpr + 3) // 4 * 4
    return f""".text
.globl {name}
.p2align 8
.type {name},@function
{name}:
{body}    s_endpgm
""", f""".amdhsa_kernel {name}
  .amdhsa_next_free_vgpr {vgpr}
  .amdhsa_next_free_sgpr {sgpr}
  .amdhsa_accum_offset {accum}
  .amdhsa_group_segment_fixed_size 0
  .amdhsa_kernarg_size 112
  .amdhsa_user_sgpr_count 2
  .amdhsa_user_sgpr_kernarg_segment_ptr 1
  .amdhsa_system_sgpr_workgroup_id_x 1
{extra_desc}.end_amdhsa_kernel
"""

def single_file(header, body, grid, block, lds, vgpr=256, sgpr=102, accum=None):
    t, d = kernel_wrap(KNAME, body, vgpr, sgpr, accum)
    return (header + f"; @launch grid=({grid},1,1) block=({block},1,1) lds={lds}\n" +
            '.amdgcn_target "amdgcn-amd-amdhsa--gfx950"\n' + t + '.section .rodata,"a"\n.p2align 6\n' + d)

class MB(Asm):
    def __init__(self):
        super().__init__()
        self.res = []
        self("""
        s_load_dwordx2 s[4:5], s[0:1], 104
        s_load_dwordx2 s[20:21], s[0:1], 0
        s_load_dwordx2 s[22:23], s[0:1], 64
        s_waitcnt lgkmcnt(0)
        s_mov_b32 s8, s4
        s_mov_b32 s9, s5
        s_mov_b32 s10, 0x4000000
        s_mov_b32 s11, 0x20000
        s_lshl_b32 s3, s2, 6
        v_mov_b32 v255, s3
        """)
    def begin(self):
        self("""
        s_waitcnt vmcnt(0) lgkmcnt(0)
        s_barrier
        s_memtime s[12:13]
        s_waitcnt lgkmcnt(0)
        """)
    def end(self, name):
        i = len(self.res)
        self.res.append(name)
        self(f"""
        s_waitcnt vmcnt(0) lgkmcnt(0)
        s_barrier
        s_memtime s[14:15]
        s_waitcnt lgkmcnt(0)
        s_sub_u32 s14, s14, s12
        v_mov_b32 v254, s14
        v_cmp_eq_u32 vcc, 0, v0
        s_and_saveexec_b64 s[16:17], vcc
        s_cbranch_execz skip_{i}
        buffer_store_dword v254, v255, s[8:11], 0 offen offset:{4*i}
        skip_{i}:
        s_mov_b64 exec, s[16:17]
        """)
    def value(self, name, vreg, lane=0):
        i = len(self.res)
        self.res.append(name)
        self(f"""
        s_waitcnt vmcnt(0) lgkmcnt(0)
        v_cmp_eq_u32 vcc, {lane}, v0
        s_and_saveexec_b64 s[16:17], vcc
        s_cbranch_execz skip_{i}
        buffer_store_dword {vreg}, v255, s[8:11], 0 offen offset:{4*i}
        skip_{i}:
        s_mov_b64 exec, s[16:17]
        """)
    def write(self, path, grid=256, block=256, lds=65536, vgpr=256):
        hdr = "".join(f"; res{i}: {n}\n" for i, n in enumerate(self.res))
        self("s_waitcnt vmcnt(0)")
        open(path, "w").write(single_file(hdr, self.text(), grid, block, lds, vgpr))
```

```python
import re

TRANS = ("v_exp_f32", "v_log_f32", "v_rcp_f32", "v_rsq_f32", "v_sqrt_f32", "v_sin_f32", "v_cos_f32")

def regs_of(tok):
    tok = tok.strip()
    tok = tok.lstrip("-")
    m = re.fullmatch(r"neg\((.*)\)", tok)
    if m: tok = m.group(1)
    m = re.fullmatch(r"abs\((.*)\)", tok) or re.fullmatch(r"\|(.*)\|", tok)
    if m: tok = m.group(1)
    m = re.fullmatch(r"([vas])(\d+)", tok)
    if m: return {(m.group(1), int(m.group(2)))}
    m = re.fullmatch(r"([vas])\[(\d+):(\d+)\]", tok)
    if m: return {(m.group(1), i) for i in range(int(m.group(2)), int(m.group(3)) + 1)}
    if tok in ("vcc", "vcc_lo", "vcc_hi"): return {("s", "vcc")}
    if tok in ("exec", "exec_lo", "exec_hi"): return {("s", "exec")}
    if tok == "m0": return {("s", "m0")}
    return set()

class Ins:
    def __init__(self, text):
        self.text = text
        t = text.split(";")[0].strip()
        self.label = t.endswith(":")
        self.op = t.split()[0] if t and not self.label else ""
        rest = t[len(self.op):].strip() if self.op else ""
        ops = [o.strip() for o in re.split(r",(?![^\[]*\])", rest)] if rest else []
        self.mods = ""
        if ops:
            parts = ops[-1].split(None, 1)
            ops[-1] = parts[0]
            if len(parts) > 1: self.mods = parts[1]
        self.ops = ops
        op = self.op
        R = [regs_of(o) for o in ops]
        U = lambda idx: set().union(*[R[i] for i in idx]) if idx else set()
        n = len(ops)
        self.cls = "other"; self.defs = set(); self.uses = set(); self.passes = 0
        self.srcC = set(); self.srcAB = set(); self.widestore = set()
        if op.startswith("v_mfma"):
            self.cls = "mfma"; self.passes = 8 if "32x32x16" in op else 4
            self.defs = R[0]; self.srcAB = R[1] | R[2]; self.srcC = R[3]; self.uses = self.srcAB | self.srcC
        elif op.startswith("v_"):
            self.cls = "valu"
            if op.startswith("v_permlane") and "swap" in op:
                self.defs = R[0] | R[1]; self.uses = R[0] | R[1]
            elif op.startswith("v_cmp"):
                self.defs = R[0]; self.uses = U(range(1, n))
            elif "_co_" in op:
                self.defs = R[0] | R[1]; self.uses = U(range(2, n))
            else:
                self.defs = R[0]; self.uses = U(range(1, n))
                if op.startswith(("v_fmac", "v_dot2c", "v_writelane")) or "dpp" in op or "row_" in self.mods or "wave_" in self.mods or "quad_perm" in self.mods:
                    self.uses |= R[0]
            self.trans = op.replace("_e32", "").replace("_e64", "") in TRANS
            self.dpp = "dpp" in op or "row_" in self.mods or "wave_" in self.mods or "quad_perm" in self.mods
        elif op.startswith(("buffer_", "global_")):
            self.cls = "vmem"
            lds = " lds" in (" " + self.mods)
            self.lds = lds
            if "load" in op and not lds:
                self.defs = R[0]; self.uses = U(range(1, n))
                if "d16" in op: self.uses |= R[0]
            else:
                self.uses = U(range(n))
                if lds: self.uses |= {("s", "m0")}
                if "store" in op and ("x4" in op or "x3" in op):
                    self.widestore = R[0] if op.startswith("buffer_") else R[1]
        elif op.startswith("ds_"):
            self.cls = "ds"
            if "read" in op or "permute" in op:
                self.defs = R[0]; self.uses = U(range(1, n))
            else:
                self.uses = U(range(n))
        elif op.startswith("s_"):
            self.cls = "salu"
            if op.startswith(("s_cmp", "s_cbranch", "s_branch", "s_waitcnt", "s_barrier", "s_nop", "s_endpgm", "s_sleep", "s_setprio")):
                self.uses = U(range(n))
            else:
                self.defs = R[0] if n else set(); self.uses = U(range(1, n))
                if "saveexec" in op: self.defs |= {("s", "exec")}
    def states(self):
        if self.label or not self.op: return 0
        if self.op == "s_nop": return int(self.ops[0], 0) + 1
        return 1

def isv(S): return {r for r in S if r[0] in "va"}
def iss(S): return {r for r in S if r[0] == "s"}

def need(p, c):
    w = 0
    if p.cls == "valu":
        vd = isv(p.defs); sd = iss(p.defs)
        if c.cls == "mfma" and vd & c.uses: w = max(w, 2)
        if c.cls == "valu":
            if c.op.startswith("v_permlane") and vd & c.uses: w = max(w, 2)
            if c.dpp and vd & c.uses: w = max(w, 2)
            if c.op.startswith(("v_readlane", "v_readfirstlane")) and vd & c.uses: w = max(w, 1)
            if p.trans and not c.trans and vd & c.uses: w = max(w, 1)
            if p.trans and c.trans and vd & c.uses: w = max(w, 1)
            if sd & c.uses: w = max(w, 4 if c.op.startswith(("v_readlane", "v_writelane")) else 2)
            if ("sdwa" in p.op or "op_sel" in p.mods) and not p.op.startswith("v_pk") and vd & (c.uses | c.defs): w = max(w, 1)
        if p.op.startswith("v_dot"):
            if c.op == p.op:
                srcab = regs_of(c.ops[1]) | regs_of(c.ops[2])
                if vd & srcab: w = max(w, 3)
            elif vd & (c.uses | c.defs): w = max(w, 3)
        if p.trans and c.cls in ("vmem", "ds") and vd & c.uses: w = max(w, 1)
        if c.cls == "vmem" and sd & c.uses: w = max(w, 5)
        if c.cls == "salu" and sd & c.uses: w = max(w, 1)
    if p.cls == "mfma":
        big = {4: 8, 8: 12}[p.passes]
        if c.cls == "mfma":
            if p.defs & c.srcAB: w = max(w, big)
            if p.defs & c.srcC and not (p.defs == c.srcC and p.passes == c.passes): w = max(w, {4: 6, 8: 10}[p.passes])
            if p.defs & c.defs and not p.defs & c.srcC: w = max(w, {4: 6, 8: 10}[p.passes])
        else:
            if p.defs & (c.uses | c.defs): w = max(w, big)
            if c.cls == "valu" and p.srcC & c.defs: w = max(w, {4: 3, 8: 7}[p.passes])
    if p.cls == "vmem" and p.widestore and p.widestore & c.defs: w = max(w, 2)
    if p.cls == "salu" and ("s", "m0") in p.defs and c.cls == "vmem" and getattr(c, "lds", False): w = max(w, 1)
    return w

class Gen:
    def __init__(self):
        self.ins = []
        self.nl = 0
        self.vm = []
        self.lg = []
        self.smem = False
    def label(self, p="L"):
        self.nl += 1
        return f"{p}_{self.nl}"
    def __call__(self, s, tag=None):
        for l in s.split("\n"):
            l = l.strip()
            if not l or l.startswith(";"): continue
            i = Ins(l)
            self.ins.append(i)
            if i.cls == "vmem": self.vm.append(tag)
            elif i.cls == "ds": self.lg.append(tag)
            elif i.op.startswith(("s_load", "s_memtime", "s_memrealtime", "s_buffer_load")): self.smem = True
            elif i.op == "s_waitcnt":
                m = re.search(r"vmcnt\((\d+)\)", l)
                if m:
                    k = int(m.group(1)); self.vm = self.vm[len(self.vm) - k:] if k < len(self.vm) and k > 0 else ([] if k == 0 else self.vm)
                m = re.search(r"lgkmcnt\((\d+)\)", l)
                if m:
                    k = int(m.group(1)); self.lg = self.lg[len(self.lg) - k:] if k < len(self.lg) and k > 0 else ([] if k == 0 else self.lg)
                    if k == 0: self.smem = False
    def _cnt(self, q, tags):
        idx = [i for i, t in enumerate(q) if t in tags]
        if not idx: return None
        return len(q) - 1 - max(idx)
    def wait(self, vm=None, lg=None):
        parts = []
        if vm is not None:
            tags = vm if isinstance(vm, (list, tuple, set)) else [vm]
            n = self._cnt(self.vm, tags)
            if n is not None: parts.append(f"vmcnt({min(n, 63)})")
        if lg is not None:
            tags = lg if isinstance(lg, (list, tuple, set)) else [lg]
            n = self._cnt(self.lg, tags)
            if n is not None:
                if self.smem: n = 0
                parts.append(f"lgkmcnt({min(n, 15)})")
        if parts: self("s_waitcnt " + " ".join(parts))
    def finalize(self):
        out = []
        for c in self.ins:
            if c.op:
                dist = 0; pad = 0
                for p in reversed(out):
                    if dist >= 20: break
                    if p.op:
                        pad = max(pad, need(p, c) - dist)
                        dist += p.states()
                while pad > 0:
                    k = min(pad, 16)
                    out.append(Ins(f"s_nop {k-1}")); pad -= k
            out.append(c)
        return "".join(("" if i.label else "    ") + i.text + "\n" for i in out)
```

```python
import sys, struct
from gcn import Gen
from asmlib import single_file

PROF = "--prof" in sys.argv
OUT = [a for a in sys.argv[1:] if not a.startswith("--")]
OUT = OUT[0] if OUT else "gated_mix__ssm_conv_s4d__dense_activation_silu__prompt.s"

UFLAG, HFLAG, AFLAG, GBUF = 0x0, 0x1000, 0x2000, 0x4000
UT, AT, HB, PROFB = 0x10000, 0x210000, 0x500000, 0xD00000
WS_BYTES = 0x1000000
KSCR, KSCR_CH = 65536, 31232
KB, KB_CH = 131072, 8416
GPART = 148480
UB_CH = 17920
W2S, W2R = 36864, 9
XCH = W2S + 4 * W2R * 2048
ATS = 143360
SPIN = 100000

SX, SW1, SW2, SWS, SOUT, SDBG = "s[4:7]", "s[8:11]", "s[12:15]", "s[16:19]", "s[20:23]", "s[24:27]"
sWave, sXcd, sSlot, sNonce, sTb, sDb = "s60", "s61", "s62", "s63", "s64", "s65"
sXb, sWb, sRot, sM0x, sLdt, sDsk = "s66", "s67", "s68", "s69", "s70", "s71"
sHs, sHf = "s72", "s73"
T0, T1, T2, T3, T4, T5 = "s28", "s29", "s30", "s31", "s3", "s46"
T6 = "s47"
L2E, L2ELO, LN2 = "0x3fb8aa3b", "0x32a57060", "0x3f317218"

g = Gen()
stamps = []
def stamp(name):
    if PROF:
        i = len(stamps); stamps.append(name)
        g(f"s_memtime s[100:101]\n s_waitcnt lgkmcnt(0)\n v_writelane_b32 v27, s100, {i}")

def vr(b, n=1): return f"v{b}" if n == 1 else f"v[{b}:{b+n-1}]"
def ar(b, n=1): return f"a{b}" if n == 1 else f"a[{b}:{b+n-1}]"

def poll(vaddr, vtmp, soff):
    L, E = g.label("poll"), g.label("done")
    g(f"""
    s_mov_b32 {T0}, 0
    {L}:
    buffer_load_dword {vtmp}, {vaddr}, {SWS}, {soff} offen sc1
    s_waitcnt vmcnt(0)
    v_cmp_ne_u32 vcc, {sNonce}, {vtmp}
    s_add_u32 {T0}, {T0}, 1
    s_cmp_gt_u32 {T0}, {SPIN}
    s_cbranch_scc1 {E}
    s_cbranch_vccnz {L}
    {E}:
    """)

def flag_store(vaddr, vtmp, soff, lanes=1):
    g(f"""
    v_mov_b32 {vtmp}, {sNonce}
    s_mov_b64 exec, {(1 << lanes) - 1}
    buffer_store_dword {vtmp}, {vaddr}, {SWS}, {soff} offen sc1
    s_mov_b64 exec, -1
    """)

def get_nonce():
    L, E = g.label("np"), g.label("nd")
    g(f"""
    s_mov_b32 {T0}, 0
    {L}:
    buffer_load_dwordx2 v[30:31], v29, {SDBG}, 0 offen sc1
    s_waitcnt vmcnt(0)
    v_readfirstlane_b32 {T1}, v31
    v_readfirstlane_b32 {sNonce}, v30
    s_add_u32 {T0}, {T0}, 1
    s_cmp_gt_u32 {T0}, {SPIN}
    s_cbranch_scc1 {E}
    s_cmp_eq_u32 {T1}, 0
    s_cbranch_scc1 {L}
    {E}:
    s_nop 4
    """)

vL16 = 2
vXS = 3
vWS_ = 7
vBa = 11
vAa = 19
vZero = 29

g(f"""
s_cmp_ge_u32 s2, 256
s_cbranch_scc1 L_end
s_load_dwordx16 s[32:47], s[0:1], 0
s_load_dwordx8 s[48:55], s[0:1], 64
s_load_dwordx4 s[56:59], s[0:1], 96
""")
if PROF: g("v_mov_b32 v27, 0")
stamp("start")
g(f"""
v_and_b32 v1, 63, v0
v_lshrrev_b32 v32, 6, v0
s_and_b32 {sXcd}, s2, 7
v_readfirstlane_b32 {sWave}, v32
s_lshr_b32 {sSlot}, s2, 3
v_lshlrev_b32 v{vL16}, 4, v1
v_mov_b32 v{vZero}, 0
""")
g(f"""
s_getpc_b64 s[28:29]
L_pc:
s_lshl_b32 {T2}, {sSlot}, 3
v_and_b32 v33, 7, v1
v_add_u32 v33, {T2}, v33
v_lshlrev_b32 v34, 8, v32
v_add_u32 v33, v33, v34
v_lshlrev_b32 v33, 7, v33
v_mov_b32 v34, L_end-L_pc
v_min_u32 v33, v33, v34
s_mov_b64 exec, 0xff
global_load_dword v28, v33, s[28:29]
s_mov_b64 exec, -1
""", tag="pf")
g(f"""
s_and_b32 {T2}, {sSlot}, 3
s_lshl_b32 {T3}, {sXcd}, 2
s_add_u32 {sTb}, {T2}, {T3}
s_lshr_b32 {sDb}, {sSlot}, 2
s_lshr_b32 {T3}, {sXcd}, 1
s_lshl_b32 {T3}, {T3}, 2
s_add_u32 {T3}, {T3}, {T2}
s_and_b32 {T4}, {sXcd}, 1
s_mul_i32 {T4}, {T4}, 7
s_add_u32 {T4}, {T4}, {sDb}
s_lshl_b32 {sRot}, {T2}, 1
s_add_u32 {sRot}, {sRot}, {sDb}
s_and_b32 {sRot}, {sRot}, 7
s_lshl_b32 {sXb}, {T3}, 2
s_add_u32 {sXb}, {sXb}, {sWave}
s_lshl_b32 {sXb}, {sXb}, 15
s_lshl_b32 {sWb}, {T4}, 8
s_mul_i32 {T2}, {sWave}, {16*3584}
s_add_u32 {sWb}, {sWb}, {T2}
s_lshl_b32 {sM0x}, {sWave}, 12
s_and_b32 {T2}, {sWave}, 1
s_lshl_b32 {T3}, {T3}, 1
s_add_u32 {T3}, {T3}, {T2}
s_lshr_b32 {T2}, {sWave}, 1
s_lshl_b32 {T4}, {T4}, 1
s_add_u32 {T4}, {T4}, {T2}
s_mul_i32 {sHs}, {T3}, 112
s_lshl_b32 {T2}, {T4}, 2
s_add_u32 {sHs}, {sHs}, {T2}
s_lshl_b32 {sHs}, {sHs}, 11
s_add_u32 {sHs}, {sHs}, {HB}
s_lshl_b32 {sHf}, {T3}, 7
s_add_u32 {sHf}, {sHf}, {T2}
s_add_u32 {sHf}, {sHf}, {HFLAG}
""")
g(f"""
v_lshrrev_b32 v36, 3, v1
v_and_b32 v37, 2, v36
v_lshlrev_b32 v37, 2, v37
v_lshrrev_b32 v38, 2, v36
v_lshl_add_u32 v37, v38, 1, v37
v_and_b32 v38, 1, v36
v_add_u32 v37, v37, v38
v_lshrrev_b32 v38, 1, v36
v_and_b32 v39, 7, v1
v_xor_b32 v38, v38, v39
v_lshlrev_b32 v38, 4, v38
v_lshl_add_u32 v{vXS}, v37, 10, v38
v_xor_b32 v37, 64, v{vXS}
v_add_u32 v{vXS+1}, {4096-1024}, v37
v_add_u32 v{vXS+2}, {16384-2048}, v{vXS}
v_add_u32 v{vXS+3}, {20480-3072}, v37
v_lshrrev_b32 v36, 4, v1
v_lshlrev_b32 v37, 2, v36
v_and_b32 v38, 15, v1
v_xor_b32 v37, v37, v38
v_lshlrev_b32 v37, 4, v37
v_mul_u32_u24 v36, 3584, v36
v_add_u32 v{vWS_}, v36, v37
v_add_u32 v{vWS_+1}, {4*3584-1024}, v{vWS_}
v_add_u32 v{vWS_+2}, {8*3584-2048}, v{vWS_}
v_add_u32 v{vWS_+3}, {12*3584-3072}, v{vWS_}
s_lshl_b32 {T2}, s2, 9
v_lshl_add_u32 v40, v0, 1, {T2}
v_mov_b32 v32, 0
v_mov_b32 v33, 0
v_mov_b32 v34, 0
v_mov_b32 v35, 0
s_lshl_b32 {T2}, s2, 2
s_waitcnt lgkmcnt(0)
""")
g(f"""
global_load_short_d16_hi v32, v40, s[34:35]
global_load_short_d16_hi v33, v40, s[36:37]
global_load_short_d16_hi v34, v40, s[38:39]
global_load_short_d16_hi v35, v40, s[40:41]
""", tag="par")
g(f"""
s_load_dword {sLdt}, s[42:43], {T2}
s_load_dword {sDsk}, s[44:45], {T2}
s_load_dword {sNonce}, s[58:59], {AFLAG}
s_mov_b32 s4, s32
s_mov_b32 s5, s33
s_mov_b32 s6, 0x200000
s_mov_b32 s7, 0x20000
s_mov_b32 s8, s48
s_mov_b32 s9, s49
s_mov_b32 s10, 0x1c0000
s_mov_b32 s11, 0x20000
s_mov_b32 s12, s50
s_mov_b32 s13, s51
s_mov_b32 s14, 0x1c0000
s_mov_b32 s15, 0x20000
s_mov_b32 s16, s58
s_mov_b32 s17, s59
s_mov_b32 s18, {WS_BYTES}
s_mov_b32 s19, 0x20000
s_mov_b32 s20, s54
s_mov_b32 s21, s55
s_mov_b32 s22, 0x200000
s_mov_b32 s23, 0x20000
s_mov_b32 s24, s56
s_mov_b32 s25, s57
s_mov_b32 s26, 256
s_mov_b32 s27, 0x20000
""")

def g1_issue(st):
    slot = st % 4
    g(f"""
    s_add_u32 {T2}, {sRot}, {st}
    s_and_b32 {T2}, {T2}, 7
    s_lshl_b32 {T3}, {T2}, 7
    s_add_u32 {T3}, {T3}, {sXb}
    s_mul_i32 {T2}, {T2}, {64*3584}
    s_add_u32 {T2}, {T2}, {sWb}
    s_add_u32 m0, {sM0x}, {slot*32768}
    """)
    for j in range(4):
        g(f"buffer_load_dwordx4 v{vXS+j}, {SX}, {T3} offen offset:{1024*j} lds", tag=f"st{st}")
    g(f"s_add_u32 m0, {sM0x}, {slot*32768+16384}")
    for j in range(4):
        g(f"buffer_load_dwordx4 v{vWS_+j}, {SW1}, {T2} offen offset:{1024*j} lds", tag=f"st{st}")

g(f"""
s_cmp_ge_u32 {sSlot}, 28
s_cbranch_scc1 L_hdma
""")
save = (list(g.vm), list(g.lg))
g1_issue(0); g1_issue(1)
g("s_branch L_kgen")
g.vm, g.lg = list(save[0]), list(save[1])
g(f"""
L_hdma:
s_lshl_b32 {T2}, {sWave}, 2
v_xor_b32 v36, {T2}, v1
v_lshlrev_b32 v36, 4, v36
v_xor_b32 v37, 32, v36
s_lshl_b32 {T3}, {sTb}, 16
s_lshl_b32 {T2}, {sWave}, 14
s_add_u32 {T3}, {T3}, {T2}
""")
for j in range(16):
    if j % 4 == 0:
        g(f"s_add_u32 m0, {T2}, {j*1024}\n s_add_u32 {T4}, {T3}, {j*1024}")
    g(f"buffer_load_dwordx4 v{36 + (j >> 3)}, {SX}, {T4} offen offset:{1024*(j%4)} lds", tag="st0" if j < 8 else "st1")

g("L_kgen:")
g(f"""
s_waitcnt lgkmcnt(0)
s_or_b32 {T2}, s2, {sWave}
s_cmp_lg_u32 {T2}, 0
s_cbranch_scc1 L_nopub
s_mul_i32 {T2}, {sNonce}, 1664525
s_add_u32 {T2}, {T2}, 1013904223
v_mov_b32 v30, {T2}
v_mov_b32 v31, 1
s_mov_b64 exec, 1
""")
vmsave = list(g.vm)
g(f"buffer_store_dwordx2 v[30:31], v{vZero}, {SDBG}, 0 offen sc1")
g.vm = vmsave
g(f"""
s_mov_b64 exec, -1
L_nopub:
""")
g.vm = vmsave
g(f"""
s_lshr_b32 {T2}, {sWave}, 1
s_lshl_b32 {T3}, {sLdt}, 16
s_and_b32 {T4}, {sLdt}, 0xffff0000
s_cmp_eq_u32 {T2}, 0
s_cselect_b32 {sLdt}, {T3}, {T4}
s_lshl_b32 {T3}, {sDsk}, 16
s_and_b32 {T4}, {sDsk}, 0xffff0000
s_cmp_eq_u32 {T2}, 0
s_cselect_b32 {sDsk}, {T3}, {T4}
s_mov_b32 {T3}, {L2E}
s_mov_b32 {T4}, {L2ELO}
s_mul_i32 {T5}, {T2}, {KSCR_CH}
s_add_u32 {T5}, {T5}, {KSCR}
v_and_b32 v41, 127, v0
v_lshrrev_b32 v42, 2, v41
v_mul_u32_u24 v42, 976, v42
v_and_b32 v41, 3, v41
v_lshl_add_u32 v41, v41, 2, v42
v_add_u32 v41, {T5}, v41
v_and_b32 v43, 31, v1
v_lshrrev_b32 v44, 5, v1
v_mul_u32_u24 v42, 976, v44
v_add_u32 v42, {T5}, v42
v_add_u32 v45, 32, v43
v_lshlrev_b32 v46, 2, v43
v_subrev_u32 v46, {4*28-11}, v46
v_cmp_lt_u32 vcc, 27, v43
v_cndmask_b32 v45, v45, v46, vcc
v_lshl_add_u32 v45, v45, 4, v42
v_lshl_add_u32 v42, v43, 4, v42
; dt
v_mov_b32 v36, {sLdt}
v_mul_f32 v37, {T3}, v36
v_fma_f32 v38, v36, {T3}, -v37
v_fmac_f32 v38, {T4}, v36
v_exp_f32 v37, v37
v_mul_f32 v38, {LN2}, v38
v_fma_f32 v36, v37, v38, v37
""")
g.wait(vm="par")
g(f"""
v_mul_f32 v37, {T3}, v32
v_fma_f32 v38, v32, {T3}, -v37
v_fmac_f32 v38, {T4}, v32
v_exp_f32 v37, v37
v_mul_f32 v38, {LN2}, v38
v_fma_f32 v37, v37, v38, v37
v_cvt_pk_bf16_f32 v36, v36, v37
v_and_b32 v37, 0xffff0000, v36
v_lshlrev_b32 v36, 16, v36
v_mul_f32 v37, v37, v36
v_mul_f32 v33, v33, v36
v_mul_f32 v37, {T3}, v37
v_mul_f32 v33, 0.15915494, v33
v_add_f32 v36, v36, v36
v_mul_f32 v34, v34, v36
v_mul_f32 v35, v35, v36
""")
for k, w in ((1.0, 48), (8.0, 50), (256.0, 52)):
    kb = struct.unpack("<I", struct.pack("<f", k))[0]
    nkb = struct.unpack("<I", struct.pack("<f", -k))[0]
    g(f"""
    v_mul_f32 v38, {hex(nkb)}, v37
    v_mul_f32 v39, {hex(kb)}, v33
    v_exp_f32 v38, v38
    v_fract_f32 v39, v39
    v_cos_f32 v{w}, v39
    v_sin_f32 v{w+1}, v39
    v_pk_mul_f32 v[{w}:{w+1}], v[{w}:{w+1}], v[38:39] op_sel_hi:[1,0]
    """)
def cmul(d, x, w):
    g(f"""
    v_pk_mul_f32 v[{d}:{d+1}], v[{x}:{x+1}], v[{w}:{w+1}] op_sel:[0,0] op_sel_hi:[1,0]
    v_pk_fma_f32 v[{d}:{d+1}], v[{x}:{x+1}], v[{w}:{w+1}], v[{d}:{d+1}] op_sel:[1,1,0] op_sel_hi:[0,1,1] neg_lo:[0,1,0]
    """)
pend = []
pkreg = [64]
def emit_row(x, rows, isG):
    pk = pkreg[0]; pkreg[0] = 64 + (pk - 64 + 1) % 16
    g(f"v_cvt_pk_bf16_f32 v{pk}, v{x}, {'-' if isG else ''}v{x+1}")
    for r in rows:
        pend.append((pk, r))
        if len(pend) == 2:
            (p0, r0), (p1, r1) = pend
            g(f"ds_write2_b32 v41, v{p0}, v{p1} offset0:{r0*4} offset1:{r1*4}", tag="kw")
            pend.clear()
W1, W8, W256, W2, W4 = 48, 50, 52, 54, 56
A_, B_, C_ = 58, 60, 62
def rowE(b): return 32 + b if b < 28 else 11 + 4 * (b - 28)
g("v_mov_b32 v80, 0x3f80")
pend.append((80, rowE(0)))
emit_row(W8, [rowE(1)], False)
cur = W8
for b in range(2, 32):
    nx = A_ if cur != A_ else B_
    cmul(nx, cur, W8); emit_row(nx, [rowE(b)], False); cur = nx
G0 = 34
emit_row(G0, [0], True)
cur = G0
for a in range(1, 8):
    nx = A_ if cur != A_ else B_
    cmul(nx, cur, W1); emit_row(nx, [a], True); cur = nx
cmul(W2, W1, W1); cmul(W4, W2, W2)
GB = [34, 46]
def nextbase(i): cmul(GB[(i + 1) % 2], GB[i % 2], W256); return GB[(i + 1) % 2]
base = nextbase(0)
emit_row(base, [8], True)
cur = base
for rows in ([9], [10, 12], [13], [14]):
    nx = A_ if cur != A_ else B_
    cmul(nx, cur, W2); emit_row(nx, rows, True); cur = nx
for i, r0 in ((1, 16), (2, 20)):
    base = nextbase(i)
    emit_row(base, [r0], True)
    cmul(A_, base, W4); emit_row(A_, [r0 + 1], True)
    cmul(B_, base, W8); emit_row(B_, [r0 + 2], True)
for i, r0 in ((3, 24), (4, 26), (5, 28), (6, 30)):
    base = nextbase(i)
    emit_row(base, [r0], True)
    cmul(A_, base, W8); emit_row(A_, [r0 + 1], True)
assert not pend
g("s_waitcnt lgkmcnt(0)\n s_barrier")
stamp("kgen valu")
KC = 128
for half in range(2):
    for ks in range(8):
        off = (half * 8 + ks) * 2 * 976
        g(f"ds_read_b128 v[{64+8*ks}:{67+8*ks}], v42 offset:{off}", tag=f"ka{ks}")
        g(f"ds_read_b128 v[{68+8*ks}:{71+8*ks}], v45 offset:{off}", tag=f"ka{ks}")
    for ks in range(8):
        g.wait(lg=f"ka{ks}")
        c = "0" if half == 0 and ks == 0 else vr(KC, 16)
        g(f"v_mfma_f32_32x32x16_bf16 {vr(KC,16)}, v[{64+8*ks}:{67+8*ks}], v[{68+8*ks}:{71+8*ks}], {c}")
g("s_barrier")
stamp("kgen mfma")
g(f"""
s_cmp_ge_u32 {sSlot}, 28
s_cbranch_scc1 L_kexp
""")
g1_issue(2); g1_issue(3)
g("L_kexp:")
g(f"""
s_lshr_b32 {T2}, {sWave}, 1
s_mul_i32 {T2}, {T2}, {KB_CH}
s_add_u32 {T2}, {T2}, {KB}
s_and_b32 {T3}, {sWave}, 1
s_lshl_b32 {T4}, {T3}, 4
s_add_u32 {T2}, {T2}, {T4}
v_mov_b32 v64, 0
v_mov_b32 v65, 0
v_mov_b32 v66, 0
v_mov_b32 v67, 0
v_lshlrev_b32 v68, 5, v1
v_add_u32 v68, {T2}, v68
s_mov_b64 exec, 0xff
ds_write_b128 v68, v[64:67] offset:{255*32}
s_mov_b64 exec, -1
v_lshlrev_b32 v68, 5, v43
v_sub_u32 v68, {T2}, v68
v_lshlrev_b32 v69, 3, v44
v_sub_u32 v69, v68, v69
v_lshlrev_b32 v70, 10, v44
v_sub_u32 v70, v68, v70
v_lshlrev_b32 v71, 11, v44
v_sub_u32 v71, v68, v71
v_mov_b32 v72, {sDsk}
v_cmp_eq_u32 vcc, 0, v1
v_cndmask_b32 v72, 0, v72, vcc
v_and_b32 v73, 1, v43
v_cmp_eq_u32 vcc, 0, v73
v_add_f32 v{KC}, v{KC}, v72
v_cndmask_b32 v74, v{KC+13}, v{KC+12}, vcc
v_cndmask_b32 v75, v{KC+15}, v{KC+14}, vcc
s_cmp_eq_u32 {T3}, 0
s_cbranch_scc1 L_ke0
""")
c = lambda i: f"v{KC+i}"
def pk(d, lo, hi): g(f"v_cvt_pk_bf16_f32 v{d}, {lo}, {hi}")
pk(76, c(3), c(2)); pk(77, c(1), c(0))
g(f"ds_write_b64 v69, v[76:77] offset:{255*32+8}")
pk(78, c(6), c(5)); pk(79, c(4), c(4))
g(f"ds_write_b64 v69, v[78:79] offset:{223*32+8}")
pk(80, c(10), c(10)); pk(81, c(9), c(9)); pk(82, c(9), c(8)); pk(83, c(8), c(8))
g(f"ds_write_b128 v70, v[80:83] offset:{191*32}")
for s in range(2):
    A, B, X = c(12 + 2 * s), c(13 + 2 * s), f"v{74+s}"
    b = 84 + 4 * s
    pk(b, B, B); pk(b + 1, B, X); pk(b + 2, A, A); g(f"v_mov_b32 v{b+3}, v{b+2}")
    g(f"ds_write_b128 v71, v[{b}:{b+3}] offset:{(127-32*s)*32}")
g("s_branch L_kdone\n L_ke0:")
pk(78, c(5), c(4)); pk(79, c(4), c(4))
g(f"ds_write_b64 v69, v[78:79] offset:{223*32+8}")
pk(80, c(10), c(9)); pk(81, c(9), c(9)); pk(82, c(8), c(8)); g("v_mov_b32 v83, v82")
g(f"ds_write_b128 v70, v[80:83] offset:{191*32}")
for s in range(2):
    A, B, X = c(12 + 2 * s), c(13 + 2 * s), f"v{74+s}"
    b = 84 + 4 * s
    pk(b, B, B); pk(b + 1, X, A); pk(b + 2, A, A); g(f"v_mov_b32 v{b+3}, v{b+2}")
    g(f"ds_write_b128 v71, v[{b}:{b+3}] offset:{(127-32*s)*32}")
pk(76, c(2), c(1)); pk(77, c(0), c(3))
g(f"""
v_lshlrev_b32 v73, 4, v44
v_sub_u32 v73, v69, v73
ds_write_b32 v69, v76 offset:{255*32+8}
ds_write_b16 v69, v77 offset:{255*32+12}
ds_write_b16_d16_hi v73, v77 offset:{255*32+6}
L_kdone:
""")
stamp("kgen done")
g(f"""
s_cmp_ge_u32 {sSlot}, 28
s_cbranch_scc1 L_helper
""")

g(f"""
v_and_b32 v36, 31, v1
v_lshrrev_b32 v37, 5, v1
v_lshrrev_b32 v38, 1, v36
v_and_b32 v38, 7, v38
v_xor_b32 v38, v38, v37
v_lshlrev_b32 v38, 4, v38
v_lshl_add_u32 v38, v36, 7, v38
s_and_b32 {T2}, {sWave}, 1
s_lshl_b32 {T2}, {T2}, 13
v_add_u32 v{vBa}, {T2}, v38
""")
for ks in range(1, 4): g(f"v_xor_b32 v{vBa+ks}, {32*ks}, v{vBa}")
for ks in range(4): g(f"v_add_u32 v{vBa+4+ks}, 65536, v{vBa+ks}")
g(f"""
v_bfe_u32 v38, v1, 2, 2
v_bfe_u32 v39, v1, 4, 1
v_bfe_u32 v40, v1, 1, 1
v_lshl_add_u32 v39, v39, 1, v40
s_lshr_b32 {T2}, {sWave}, 1
s_lshl_b32 {T2}, {T2}, 3
v_or_b32 v39, {T2}, v39
v_lshlrev_b32 v40, 2, v38
v_xor_b32 v39, v39, v40
v_lshlrev_b32 v39, 4, v39
v_lshl_add_u32 v38, v37, 3, v38
v_lshl_add_u32 v39, v38, 8, v39
v_and_b32 v40, 1, v1
v_lshl_add_u32 v39, v40, 3, v39
v_add_u32 v{vAa}, 16384, v39
v_xor_b32 v{vAa+1}, 64, v{vAa}
v_add_u32 v{vAa+2}, 65536, v{vAa}
v_add_u32 v{vAa+3}, 65536, v{vAa+1}
""")
ACC = 128
def g1_reads(i):
    st, ks = divmod(i, 4)
    slot = st % 4; pr, so = divmod(slot, 2); so *= 32768
    fb = 32 + 16 * (i % 2)
    out = []
    for a in range(2):
        for h in range(2):
            out.append(f"ds_read_b64_tr_b16 v[{fb+4*a+2*h}:{fb+4*a+2*h+1}], v{vAa+2*pr+a} offset:{so + ks*4096 + h*1024}")
    for b in range(2):
        out.append(f"ds_read_b128 v[{fb+8+4*b}:{fb+11+4*b}], v{vBa+4*pr+ks} offset:{so + b*4096}")
    return out
g.wait(vm="st0"); g("s_waitcnt lgkmcnt(0)\n s_barrier")
stamp("st0 landed")
for r in g1_reads(0): g(r, tag="f0")
for i in range(32):
    st, ks = divmod(i, 4)
    fb = 32 + 16 * (i % 2)
    g.wait(lg=f"f{i}")
    mf = []
    for a in range(2):
        for b in range(2):
            acc = vr(ACC + 16 * (2 * a + b), 16)
            mf.append(f"v_mfma_f32_32x32x16_bf16 {acc}, v[{fb+4*a}:{fb+4*a+3}], v[{fb+8+4*b}:{fb+11+4*b}], {'0' if i == 0 else acc}")
    g(mf[0])
    if ks == 3:
        if st < 7: g.wait(vm=f"st{st+1}")
        g("s_barrier")
    rd = g1_reads(i + 1) if i < 31 else []
    for r in rd[:2]: g(r, tag=f"f{i+1}")
    g(mf[1])
    for r in rd[2:4]: g(r, tag=f"f{i+1}")
    g(mf[2])
    for r in rd[4:]: g(r, tag=f"f{i+1}")
    g(mf[3])
    if ks == 3 and st + 4 < 8: g1_issue(st + 4)
stamp("gemm1 done")
get_nonce()
g(f"""
s_mov_b32 {T2}, 0xbfb8aa3b
v_mov_b32 v64, {T2}
v_mov_b32 v65, {T2}
s_add_u32 {T3}, {sHs}, 4096
""")
for a in range(2):
    for b in range(2):
        for hh in range(2):
            z = ACC + 16 * (2 * a + b) + 8 * hh
            o = 192 + 4 * (4 * a + 2 * b + hh)
            t = 66
            for p in range(4): g(f"v_pk_mul_f32 v[{t+2*p}:{t+2*p+1}], v[{z+2*p}:{z+2*p+1}], v[64:65]")
            for p in range(8): g(f"v_exp_f32 v{t+p}, v{t+p}")
            for p in range(4): g(f"v_pk_add_f32 v[{t+2*p}:{t+2*p+1}], v[{t+2*p}:{t+2*p+1}], 1.0 op_sel_hi:[1,0]")
            for p in range(8): g(f"v_rcp_f32 v{t+p}, v{t+p}")
            for p in range(4): g(f"v_pk_mul_f32 v[{t+2*p}:{t+2*p+1}], v[{t+2*p}:{t+2*p+1}], v[{z+2*p}:{z+2*p+1}]")
            for p in range(4): g(f"v_cvt_pk_bf16_f32 v{o+p}, v{t+2*p}, v{t+2*p+1}")
            g(f"buffer_store_dwordx4 v[{o}:{o+3}], v{vL16}, {SWS}, {T3 if a else sHs} offen offset:{hh*2048+b*1024} sc1", tag="hst")
stamp("silu done")
g("s_waitcnt vmcnt(0)")
flag_store(f"v{vZero}", "v30", sHf)
stamp("h flag")
g("s_branch L_conv")

g.vm, g.lg = [], []
g("L_helper:")
g(f"""
v_and_b32 v36, 7, v1
v_lshrrev_b32 v37, 3, v1
s_lshl_b32 {T2}, {sWave}, 4
v_add_u32 v37, {T2}, v37
v_lshlrev_b32 v38, 4, v37
global_load_dwordx4 v[48:51], v38, s[52:53]
global_load_dwordx4 v[52:55], v38, s[52:53] offset:128
v_lshlrev_b32 v39, 1, v36
v_xor_b32 v39, v39, v37
v_lshlrev_b32 v39, 4, v39
v_lshl_add_u32 v39, v36, 13, v39
v_xor_b32 v40, 128, v39
v_lshlrev_b32 v41, 15, v37
v_lshl_add_u32 v41, v36, 4, v41
v_add_u32 v42, {8*8*4096}, v41
s_lshl_b32 {T3}, {sTb}, 7
s_add_u32 {T3}, {T3}, {UT}
s_mov_b32 {T5}, 0x05040100
s_mov_b32 {T6}, 0x07060302
s_waitcnt vmcnt(0)
s_barrier
""")
for it in range(2):
    for j in range(8):
        g(f"ds_read_b128 v[{64+32*it+4*j}:{67+32*it+4*j}], v{39+it} offset:{j*1024}", tag=f"hx{it}")
for it in range(2):
    g.wait(lg=f"hx{it}")
    for jj in range(8):
        o = 128 + 32 * it + 4 * jj
        for m in range(4):
            s1 = 64 + 32 * it + 4 * (2 * m) + (jj >> 1)
            g(f"v_perm_b32 v{o+m}, v{s1+4}, v{s1}, {T6 if jj & 1 else T5}")
        g(f"s_add_u32 {T4}, {T3}, {jj*4096}")
        g(f"buffer_store_dwordx4 v[{o}:{o+3}], v{41+it}, {SWS}, {T4} offen sc1", tag="ust")
for j in range(8):
    for it in range(2):
        for k in range(4):
            x = 64 + 32 * it + 4 * j + k
            g(f"v_dot2_f32_bf16 v{56+j}, v{x}, v{48+4*it+k}, {'0' if it == 0 and k == 0 else f'v{56+j}'}")
get_nonce()
g(f"""
s_lshl_b32 {T2}, {sWave}, 10
s_lshl_b32 {T3}, {sTb}, 2
s_add_u32 {T2}, {T2}, {T3}
v_lshlrev_b32 v43, 7, v1
""")
flag_store("v43", "v30", T2, lanes=8)
stamp_h = len(stamps)
for p in range(4):
    g(f"v_permlane32_swap_b32 v{56+2*p}, v{57+2*p}\n v_add_f32 v{56+2*p}, v{56+2*p}, v{57+2*p}")
g(f"""
v_permlane16_swap_b32 v56, v58
v_add_f32 v56, v56, v58
v_permlane16_swap_b32 v60, v62
v_add_f32 v60, v60, v62
v_add_f32_dpp v56, v56, v56 row_ror:8 row_mask:0xf bank_mask:0xf
v_add_f32_dpp v60, v60, v60 row_ror:8 row_mask:0xf bank_mask:0xf
v_bfe_u32 v44, v1, 3, 1
v_cmp_eq_u32 vcc, 0, v44
v_cndmask_b32 v56, v60, v56, vcc
v_bfe_u32 v45, v1, 4, 1
v_lshrrev_b32 v46, 5, v1
v_lshl_add_u32 v45, v45, 1, v46
v_lshl_add_u32 v45, v44, 2, v45
v_lshl_add_u32 v45, v36, 3, v45
s_lshl_b32 {T2}, {sWave}, 8
s_add_u32 {T2}, {T2}, {GPART}
v_lshl_add_u32 v45, v45, 2, {T2}
ds_write_b32 v45, v56
s_waitcnt lgkmcnt(0)
s_barrier
s_cmp_lg_u32 {sWave}, 0
s_cbranch_scc1 L_conv
v_lshlrev_b32 v45, 2, v1
v_add_u32 v46, {GPART}, v45
ds_read_b32 v56, v46
ds_read_b32 v57, v46 offset:256
ds_read_b32 v58, v46 offset:512
ds_read_b32 v59, v46 offset:768
s_waitcnt lgkmcnt(0)
v_add_f32 v56, v56, v57
v_add_f32 v58, v58, v59
v_add_f32 v56, v56, v58
v_cvt_pk_bf16_f32 v56, v56, v56
v_lshlrev_b32 v56, 16, v56
v_mul_f32 v56, 0xbfb8aa3b, v56
v_exp_f32 v56, v56
v_add_f32 v56, 1.0, v56
v_rcp_f32 v56, v56
v_cvt_pk_bf16_f32 v56, v56, v56
v_lshlrev_b32 v56, 16, v56
s_lshl_b32 {T2}, {sTb}, 8
s_add_u32 {T2}, {T2}, {GBUF}
buffer_store_dword v56, v45, {SWS}, {T2} offen sc1
s_lshl_b32 {T2}, {sTb}, 7
s_add_u32 {T2}, {T2}, {HFLAG + 28*4}
s_waitcnt vmcnt(0)
""")
flag_store(f"v{vZero}", "v30", T2)

g.vm, g.lg = [None] * 4, []
g("L_conv:")
g(f"""
s_lshr_b32 {T2}, s2, 6
s_lshl_b32 {T2}, {T2}, 3
s_add_u32 {T2}, {T2}, {sXcd}
s_lshl_b32 {T2}, {T2}, 7
v_and_b32 v36, 31, v1
v_lshlrev_b32 v36, 2, v36
""")
poll("v36", "v37", T2)
stamp("u poll")
g(f"""
s_lshr_b32 {T2}, {sWave}, 1
s_and_b32 {T3}, {sWave}, 1
s_mul_i32 {T4}, {T2}, {UB_CH}
s_lshl_b32 {T5}, s2, 1
s_add_u32 {T5}, {T5}, {T2}
s_lshl_b32 {T5}, {T5}, 12
s_add_u32 {T5}, {T5}, {UT + 24*16 - 396}
s_lshl_b32 {T0}, {T3}, 11
s_add_u32 {T5}, {T5}, {T0}
s_lshl_b32 {T0}, {T3}, 13
s_add_u32 {T0}, {T0}, {T4}
v_lshrrev_b32 v36, 2, v1
v_lshrrev_b32 v37, 5, v1
v_xor_b32 v37, 1, v37
v_lshlrev_b32 v37, 1, v37
v_xor_b32 v36, v36, v37
v_and_b32 v37, 3, v1
v_lshlrev_b32 v37, 2, v37
v_lshl_add_u32 v36, v36, 4, v37
""")
for jj in range(8):
    g(f"s_add_u32 m0, {T0}, {24*64 + jj*1024}\n s_add_u32 {T1}, {T5}, {jj*256}")
    g(f"buffer_load_dwordx4 v36, {SWS}, {T1} offen sc1 lds", tag="udma")
g(f"""
v_mov_b32 v64, 0
v_mov_b32 v65, 0
v_mov_b32 v66, 0
v_mov_b32 v67, 0
s_mul_i32 {T1}, {T3}, 768
s_add_u32 {T1}, {T1}, {T4}
v_add_u32 v38, {T1}, v{vL16}
s_mov_b32 exec_hi, 0xffff
ds_write_b128 v38, v[64:67]
s_mov_b64 exec, -1
""")
vKA, vUB = 23, 24
g(f"""
v_and_b32 v36, 15, v1
v_lshrrev_b32 v37, 4, v1
v_lshrrev_b32 v38, 1, v36
v_sub_u32 v38, v37, v38
v_add_u32 v38, 7, v38
v_and_b32 v39, 1, v1
v_lshl_add_u32 v38, v38, 1, v39
s_mul_i32 {T1}, {T2}, {KB_CH}
s_add_u32 {T1}, {T1}, {KB}
s_lshl_b32 {T0}, {T3}, 9
s_add_u32 {T1}, {T1}, {T0}
v_lshl_add_u32 v{vKA}, v38, 4, {T1}
v_lshrrev_b32 v38, 2, v36
v_and_b32 v39, 1, v38
v_lshlrev_b32 v39, 1, v39
v_xor_b32 v39, v39, v37
v_lshl_add_u32 v39, v38, 3, v39
v_and_b32 v38, 3, v1
v_lshl_add_u32 v39, v39, 2, v38
s_lshl_b32 {T0}, {T3}, 10
s_add_u32 {T1}, {T4}, {T0}
v_lshl_add_u32 v{vUB}, v39, 4, {T1}
v_xor_b32 v{vUB+1}, 128, v{vUB}
v_lshlrev_b32 v38, 2, v1
v_add_u32 v38, {T4}, v38
""")
g.wait(vm="udma")
g(f"""
s_mov_b64 exec, 0x137
ds_write_b32 v38, v64 offset:{26*64}
s_mov_b64 exec, -1
""")
g("s_waitcnt lgkmcnt(0)\n s_barrier")
stamp("u landed")
CACC = 224
for rr in range(4):
    fa, fb = 32, 64
    for a in range(8):
        g(f"ds_read_b128 v[{fa+4*a}:{fa+4*a+3}], v{vKA} offset:{(224-32*a+4*rr)*32}", tag=f"ca{a}")
        g(f"ds_read_b128 v[{fb+4*a}:{fb+4*a+3}], v{vUB + (rr >> 1)} offset:{(32*a+4*rr)*64}", tag=f"ca{a}")
    for mx in range(8):
        g.wait(lg=f"ca{mx}")
        prs = [(a, b) for a in range(mx + 1) for b in range(mx + 1) if max(a, b) == mx and a + b <= 7]
        for (a, b) in prs:
            j = a + b
            first = rr == 0 and (a, b) == ((j + 1) // 2 if False else None)
            acc = vr(CACC + 4 * j, 4)
            if rr == 0 and j not in getattr(g, "cinit", set()):
                g.cinit = getattr(g, "cinit", set()) | {j}; cc = "0"
            else: cc = acc
            g(f"v_mfma_f32_16x16x32_bf16 {acc}, v[{fa+4*a}:{fa+4*a+3}], v[{fb+4*b}:{fb+4*b+3}], {cc}")
stamp("conv mfma")
g(f"""
s_lshl_b32 {T0}, {sWave}, 12
s_add_u32 {T0}, {T0}, {XCH}
v_add_u32 v36, {T0}, v{vL16}
s_xor_b32 {T0}, {sWave}, 1
s_lshl_b32 {T0}, {T0}, 12
s_add_u32 {T0}, {T0}, {XCH}
v_add_u32 v37, {T0}, v{vL16}
s_nop 7
s_cmp_eq_u32 {T3}, 0
s_cbranch_scc1 L_x0
""")
assert XCH % 8192 == 0 or True
for par in (1, 0):
    keep = CACC + 16 * par; send = CACC + 16 * (1 - par)
    for k in range(4):
        g(f"ds_write_b128 v36, v[{send+4*k}:{send+4*k+3}] offset:{k*1024}")
    g("s_waitcnt lgkmcnt(0)\n s_barrier")
    for k in range(4):
        g(f"ds_read_b128 v[{64+4*k}:{67+4*k}], v37 offset:{k*1024}")
    g("s_waitcnt lgkmcnt(0)")
    for k in range(8):
        g(f"v_pk_add_f32 v[{64+2*k}:{65+2*k}], v[{64+2*k}:{65+2*k}], v[{keep+2*k}:{keep+2*k+1}]")
    if par == 1: g("s_branch L_x1\n L_x0:")
g("L_x1:")
for p in range(2):
    o = 80 + 4 * p
    x, y = 64 + 8 * p, 68 + 8 * p
    g(f"""
    v_cvt_pk_bf16_f32 v{o}, v{x}, v{x+1}
    v_cvt_pk_bf16_f32 v{o+1}, v{x+2}, v{x+3}
    v_cvt_pk_bf16_f32 v{o+2}, v{y}, v{y+1}
    v_cvt_pk_bf16_f32 v{o+3}, v{y+2}, v{y+3}
    v_permlane16_swap_b32 v{o}, v{o+2}
    v_permlane16_swap_b32 v{o+1}, v{o+3}
    """)
g(f"""
v_bfe_u32 v36, v1, 4, 1
v_bfe_u32 v37, v1, 2, 2
v_lshl_add_u32 v36, v36, 2, v37
v_lshrrev_b32 v37, 5, v1
v_lshl_add_u32 v36, v36, 1, v37
v_and_b32 v37, 3, v1
v_lshl_add_u32 v36, v36, 2, v37
v_lshlrev_b32 v36, 4, v36
s_lshl_b32 {T5}, s2, 1
s_add_u32 {T5}, {T5}, {T2}
s_lshl_b32 {T0}, {T5}, 12
s_lshl_b32 {T1}, {T3}, 11
s_add_u32 {T0}, {T0}, {T1}
s_add_u32 {T0}, {T0}, {AT}
buffer_store_dwordx4 v[80:83], v36, {SWS}, {T0} offen sc1
buffer_store_dwordx4 v[84:87], v36, {SWS}, {T0} offen offset:1024 sc1
s_lshr_b32 {T0}, {T5}, 6
s_lshl_b32 {T0}, {T0}, 1
s_add_u32 {T0}, {T0}, {T3}
s_lshl_b32 {T0}, {T0}, 8
s_and_b32 {T1}, {T5}, 63
s_lshl_b32 {T1}, {T1}, 2
s_add_u32 {T0}, {T0}, {T1}
s_add_u32 {T1}, {T0}, {AFLAG}
s_waitcnt vmcnt(0)
""")
flag_store(f"v{vZero}", "v30", T1)
stamp("a flag")

vW2s, vW2r = 3, 7
g(f"""
v_lshrrev_b32 v36, 3, v1
v_bfe_u32 v37, v1, 4, 1
v_lshlrev_b32 v37, 2, v37
v_and_b32 v38, 7, v1
v_xor_b32 v37, v37, v38
v_lshlrev_b32 v37, 4, v37
v_lshl_add_u32 v{vW2s}, v36, 10, v37
v_add_u32 v{vW2s+1}, 7168, v{vW2s}
v_bfe_u32 v36, v1, 2, 2
v_lshrrev_b32 v37, 5, v1
v_lshl_add_u32 v37, v37, 2, v36
v_lshlrev_b32 v37, 7, v37
v_bfe_u32 v38, v1, 4, 1
v_bfe_u32 v39, v1, 1, 1
v_lshl_add_u32 v38, v38, 1, v39
v_bfe_u32 v39, v1, 3, 1
v_lshl_add_u32 v38, v39, 2, v38
v_lshl_add_u32 v37, v38, 4, v37
v_and_b32 v38, 1, v1
v_lshl_add_u32 v37, v38, 3, v37
s_lshr_b32 {T0}, {sWave}, 1
s_lshl_b32 {T0}, {T0}, 6
v_xor_b32 v37, {T0}, v37
s_mul_i32 {T4}, {sWave}, {W2R*2048}
s_add_u32 {T4}, {T4}, {W2S}
v_add_u32 v{vW2r}, {T4}, v37
v_xor_b32 v{vW2r+1}, 64, v{vW2r}
s_mul_i32 {T5}, {sWave}, {28*16384}
s_lshl_b32 {T0}, {sDb}, 7
s_add_u32 {T5}, {T5}, {T0}
""")
def w2_issue(k):
    g(f"s_add_u32 m0, {T4}, {(k % W2R)*2048}\n s_add_u32 {T1}, {T5}, {k*16384}")
    g(f"buffer_load_dwordx4 v{vW2s}, {SW2}, {T1} offen lds", tag=f"w2_{k}")
    g(f"buffer_load_dwordx4 v{vW2s+1}, {SW2}, {T1} offen offset:1024 lds", tag=f"w2_{k}")
def w2_read(k):
    g.wait(vm=f"w2_{k}")
    for j in range(2):
        for h in range(2):
            g(f"ds_read_b64_tr_b16 a[{8*k+4*j+2*h}:{8*k+4*j+2*h+1}], v{vW2r+j} offset:{(k % W2R)*2048 + h*1024}", tag=f"w2r{k}")
for k in range(W2R - 1): w2_issue(k)
for k in range(28):
    w2_read(k)
    if k + W2R - 1 < 28:
        if k >= 1: g.wait(lg=f"w2r{k-1}")
        w2_issue(k + W2R - 1)
stamp("w2 loaded")

g(f"""
v_min_u32 v36, 28, v1
v_lshlrev_b32 v36, 2, v36
s_lshl_b32 {T2}, {sTb}, 7
s_add_u32 {T2}, {T2}, {HFLAG}
""")
poll("v36", "v37", T2)
stamp("h poll")
vH = 9
g(f"""
s_and_b32 {T0}, {sWave}, 1
s_lshl_b32 {T0}, {T0}, 10
v_add_u32 v{vH}, {T0}, v{vL16}
v_xor_b32 v{vH+1}, 1024, v{vH}
s_mul_i32 {T2}, {sTb}, 112
s_mul_i32 {T0}, {sWave}, 28
s_add_u32 {T2}, {T2}, {T0}
s_lshl_b32 {T2}, {T2}, 11
s_add_u32 {T2}, {T2}, {HB}
""")
HD = 8
HBUF = 64
def h_issue(k):
    if k % 2 == 0: g(f"s_add_u32 {T3}, {T2}, {k*2048}")
    for j in range(2):
        r = HBUF + 8 * (k % HD) + 4 * j
        g(f"buffer_load_dwordx4 v[{r}:{r+3}], v{vH+j}, {SWS}, {T3} offen offset:{(k%2)*2048} sc1", tag=f"h{k}")
ACC2 = 192
for k in range(HD): h_issue(k)
g("s_waitcnt lgkmcnt(0)")
for k in range(28):
    g.wait(vm=f"h{k}")
    for ja in range(2):
        for jb in range(2):
            acc = vr(ACC2 + 16 * (2 * ja + jb), 16)
            r = HBUF + 8 * (k % HD) + 4 * jb
            g(f"v_mfma_f32_32x32x16_bf16 {acc}, a[{8*k+4*ja}:{8*k+4*ja+3}], v[{r}:{r+3}], {'0' if k == 0 else acc}")
    if k + HD < 28: h_issue(k + HD)
stamp("gemm2 done")
g(f"""
s_lshr_b32 {T0}, {sTb}, 4
s_lshl_b32 {T2}, {sDb}, 1
s_add_u32 {T2}, {T2}, {T0}
s_lshl_b32 {T2}, {T2}, 8
s_add_u32 {T2}, {T2}, {AFLAG}
v_lshlrev_b32 v36, 2, v1
""")
poll("v36", "v37", T2)
g(f"""
v_lshrrev_b32 v36, 3, v1
v_and_b32 v37, 127, v{vW2s}
v_lshl_add_u32 v36, v36, 12, v37
v_add_u32 v37, {8*4096-1024}, v36
s_lshl_b32 {T0}, {sDb}, 2
s_add_u32 {T0}, {T0}, {sWave}
s_lshl_b32 {T0}, {T0}, 16
s_lshl_b32 {T1}, {sTb}, 7
s_add_u32 {T0}, {T0}, {T1}
s_add_u32 {T0}, {T0}, {AT}
s_lshl_b32 {T1}, {sWave}, 11
s_add_u32 m0, {T1}, {ATS}
s_nop 0
buffer_load_dwordx4 v36, {SWS}, {T0} offen sc1 lds
buffer_load_dwordx4 v37, {SWS}, {T0} offen offset:1024 sc1 lds
v_and_b32 v38, 17, v1
v_bfe_u32 v39, v1, 1, 1
v_lshl_add_u32 v38, v39, 3, v38
v_bfe_u32 v39, v1, 2, 2
v_lshl_add_u32 v38, v39, 1, v38
s_and_b32 {T1}, {sWave}, 1
s_lshl_b32 {T1}, {T1}, 5
s_lshl_b32 {T0}, {sTb}, 6
s_add_u32 {T1}, {T1}, {T0}
v_add_u32 v38, {T1}, v38
v_lshlrev_b32 v39, 2, v38
s_mov_b32 {T0}, {GBUF}
buffer_load_dword v40, v39, {SWS}, {T0} offen sc1
""")
for j in range(1, 4):
    g(f"""
    s_xor_b32 {T0}, {sWave}, {j}
    s_mul_i32 {T1}, {T0}, 12288
    s_cmp_eq_u32 {T0}, 3
    s_cselect_b32 {T1}, {KB}, {T1}
    s_add_u32 {T1}, {T1}, {(j-1)*4096}
    v_add_u32 v41, {T1}, v{vL16}
    """)
    for k in range(4):
        r = ACC2 + 16 * j + 4 * k
        g(f"ds_write_b128 v41, v[{r}:{r+3}] offset:{k*1024}")
g(f"""
s_mul_i32 {T1}, {sWave}, 12288
s_cmp_eq_u32 {sWave}, 3
s_cselect_b32 {T1}, {KB}, {T1}
v_add_u32 v41, {T1}, v{vL16}
v_bfe_u32 v42, v1, 2, 2
v_lshrrev_b32 v43, 5, v1
v_lshl_add_u32 v43, v43, 2, v42
v_lshlrev_b32 v43, 7, v43
v_and_b32 v42, 3, v1
v_lshl_add_u32 v43, v42, 4, v43
v_bfe_u32 v42, v1, 4, 1
v_lshl_add_u32 v43, v42, 3, v43
v_bfe_u32 v42, v1, 3, 1
v_lshlrev_b32 v42, 6, v42
v_xor_b32 v43, v43, v42
s_and_b32 {T0}, {sWave}, 1
s_lshl_b32 {T0}, {T0}, 6
v_xor_b32 v43, {T0}, v43
s_lshr_b32 {T0}, {sWave}, 1
s_lshl_b32 {T1}, {T0}, 12
s_add_u32 {T1}, {T1}, {ATS}
v_add_u32 v43, {T1}, v43
v_lshrrev_b32 v42, 5, v1
v_lshlrev_b32 v42, 4, v42
v_lshl_add_u32 v42, v38, 10, v42
s_lshl_b32 {T0}, {T0}, 6
s_lshl_b32 {T1}, {sDb}, 7
s_add_u32 {T2}, {T0}, {T1}
s_waitcnt vmcnt(0) lgkmcnt(0)
s_barrier
""")
for j in range(3):
    for k in range(4):
        r = 64 + 16 * j + 4 * k
        g(f"ds_read_b128 v[{r}:{r+3}], v41 offset:{j*4096+k*1024}", tag=f"rd{j}")
for gg in range(4):
    g(f"ds_read_b64_tr_b16 v[{112+2*gg}:{113+2*gg}], v43 offset:{gg*1024}", tag="ra")
for j in range(3):
    g.wait(lg=f"rd{j}")
    for k in range(8):
        g(f"v_pk_add_f32 v[{ACC2+2*k}:{ACC2+2*k+1}], v[{ACC2+2*k}:{ACC2+2*k+1}], v[{64+16*j+2*k}:{65+16*j+2*k}]")
g.wait(lg="ra")
for k in range(8):
    b = ACC2 + 2 * k
    g(f"""
    v_lshlrev_b32 v64, 16, v{112+k}
    v_and_b32 v65, 0xffff0000, v{112+k}
    v_pk_add_f32 v[64:65], v[64:65], v[{b}:{b+1}] neg_lo:[0,1] neg_hi:[0,1]
    v_pk_fma_f32 v[64:65], v[64:65], v[40:41], v[{b}:{b+1}] op_sel_hi:[1,0,1]
    v_cvt_pk_bf16_f32 v{120+k}, v64, v65
    """)
for p in range(2):
    o = 120 + 4 * p
    g(f"""
    v_permlane32_swap_b32 v{o}, v{o+2}
    v_permlane32_swap_b32 v{o+1}, v{o+3}
    buffer_store_dwordx4 v[{o}:{o+3}], v42, {SOUT}, {T2} offen offset:{32*p}
    """)
stamp("end")
if PROF:
    g(f"""
    s_waitcnt vmcnt(0) lgkmcnt(0)
    s_lshl_b32 {T0}, s2, 2
    s_add_u32 {T0}, {T0}, {sWave}
    s_lshl_b32 {T0}, {T0}, 8
    s_add_u32 {T0}, {T0}, {PROFB}
    v_lshlrev_b32 v36, 2, v1
    buffer_store_dword v27, v36, {SWS}, {T0} offen
    """)
g("L_end:")

hdr = "".join(l for l in open("gated_mix__ssm_conv_s4d__dense_activation_silu__prompt.s.ref").readlines()[:17])
if PROF: hdr += "; stamps: " + ",".join(stamps) + "\n"
open(OUT, "w").write(single_file(hdr, g.finalize(), 256, 256, 163840, 512, 102, 256))
print("written", OUT, "instrs", len(g.ins), "stamps", len(stamps))
```
